```python
import torch

def _softmax(x, axis=-1):
    return torch.softmax(x, dim=axis)

def _gelu(x):
    return torch.nn.functional.gelu(x, approximate='tanh')

def _silu(x):
    return torch.nn.functional.silu(x)

def _sigmoid(x):
    return torch.sigmoid(x)

def _layernorm(x, axis=-1, eps=1e-05):
    m = x.mean(dim=axis, keepdim=True)
    v = x.var(dim=axis, keepdim=True, unbiased=False)
    return (x - m) / torch.sqrt(v + eps)

def _scatter_add(tgt, idx, src, axis=0):
    return tgt.clone().index_add_(axis, idx, src)

def _segment_sum(src, seg, n):
    out = torch.zeros((n,) + src.shape[1:], dtype=src.dtype)
    return out.index_add_(0, seg, src)

def _pad(x, pw):
    flat = tuple((v for pair in reversed(pw) for v in pair))
    return torch.nn.functional.pad(x, flat)
kernel_name = 'adaLN_cond__mha_block_cached__glu_gated_bilinear__decode'

def setup_inputs():

    _w = lambda a: (lambda t: t.to(torch.bfloat16) if t.is_floating_point() else t)(torch.as_tensor(a))

    def _A_setup():
        B, Sq, D = (2, 1, 512)
        H, Sk, Dh = (32, 32768, 128)
        return {'x': _w((lambda *s: torch.randn(*s, dtype=torch.bfloat16) * 0.05)(B, Sq, D)), 'k_cache': _w((lambda *s: torch.randn(*s, dtype=torch.bfloat16) * 0.8)(B, H, Sk, Dh)), 'v_cache': _w((lambda *s: torch.randn(*s, dtype=torch.bfloat16) * 3.2)(B, H, Sk, Dh)), 'wq': _w((lambda *s: torch.randn(*s, dtype=torch.bfloat16) * 0.8)(D, H * Dh) * D ** (-0.5)), 'wo': _w((lambda *s: torch.randn(*s, dtype=torch.bfloat16) * 3.2)(H * Dh, D) * (H * Dh) ** (-0.5))}
    _A_in = _A_setup()

    def _B_setup():
        B, S, D, F = (2, 1, 512, 1792)
        return {'x': _w((lambda *s: torch.randn(*s, dtype=torch.bfloat16) * 0.05)(B, S, D)), 'w_gate': _w((lambda *s: torch.randn(*s, dtype=torch.bfloat16) * 3.2)(D, F) * D ** (-0.5)), 'w_up': _w((lambda *s: torch.randn(*s, dtype=torch.bfloat16) * 3.2)(D, F) * D ** (-0.5)), 'w_down': _w((lambda *s: torch.randn(*s, dtype=torch.bfloat16) * 3.2)(F, D) * F ** (-0.5))}
    _B_in = _B_setup()
    return {'A_x': _A_in['x'], 'A_k_cache': _A_in['k_cache'], 'A_v_cache': _A_in['v_cache'], 'A_wq': _A_in['wq'], 'A_wo': _A_in['wo'], 'B_x': _B_in['x'], 'B_w_gate': _B_in['w_gate'], 'B_w_up': _B_in['w_up'], 'B_w_down': _B_in['w_down'], 'c': _w((lambda *s: torch.randn(*s, dtype=torch.bfloat16) * 0.2)(2, 512) * 8.0), 'w_mod': _w((lambda *s: torch.randn(*s, dtype=torch.bfloat16) * 0.2)(512, 6 * 512) * 512 ** (-0.5) * 8.0)}

def reference(A_x, A_k_cache, A_v_cache, A_wq, A_wo, B_x, B_w_gate, B_w_up, B_w_down, c, w_mod):

    def _A_ref(x, k_cache, v_cache, wq, wo):
        B, Sq, D = x.shape
        H, Dh = (32, 128)
        q = (lambda x, *d: x.permute(*d))((x @ wq).reshape(B, Sq, H, Dh), 0, 2, 1, 3)
        scores = torch.einsum('bhqd,bhkd->bhqk', q, k_cache) * Dh ** (-0.5)
        p = _softmax(scores, axis=-1)
        o = torch.einsum('bhqk,bhkd->bhqd', p, v_cache)
        return (lambda x, *d: x.permute(*d))(o, 0, 2, 1, 3).reshape(B, Sq, H * Dh) @ wo

    def _B_ref(x, w_gate, w_up, w_down):
        g = torch.einsum('bsd,df->bsf', x, w_gate)
        u = torch.einsum('bsd,df->bsf', x, w_up)
        h = g * u
        return torch.einsum('bsf,fd->bsd', h, w_down)
    x = A_x
    mod = (_silu(c) @ w_mod).reshape(c.shape[0], 6, 1, -1)
    sa, ca, ga, sb, cb, gb = (mod[:, 0].clone(), mod[:, 1].clone(), mod[:, 2].clone(), mod[:, 3].clone(), mod[:, 4].clone(), mod[:, 5].clone())
    h = _layernorm(x, axis=-1) * (1 + ca) + sa
    x = x + ga * _A_ref(h, A_k_cache, A_v_cache, A_wq, A_wo)
    h = _layernorm(x, axis=-1) * (1 + cb) + sb
    x = x + gb * _B_ref(h, B_w_gate, B_w_up, B_w_down)
    return x
```

```python
import re

TRANS = ('v_exp_f32','v_log_f32','v_rcp_f32','v_rsq_f32','v_sqrt_f32','v_sin_f32','v_cos_f32','v_rcp_iflag_f32')
REG_RE = re.compile(r'^(-|\|)?(abs\()?([vsa])(\d+)\)?\|?$')
RNG_RE = re.compile(r'^(-|\|)?([vsa])\[(\d+):(\d+)\]\|?$')

def regs_of(op):
    op = op.strip()
    m = REG_RE.match(op)
    if m: return {(m.group(3), int(m.group(4)))}
    m = RNG_RE.match(op)
    if m: return {(m.group(2), i) for i in range(int(m.group(3)), int(m.group(4))+1)}
    if op == 'vcc': return {('s','vcc_lo'),('s','vcc_hi')}
    if op in ('vcc_lo','vcc_hi'): return {('s',op)}
    if op == 'exec': return {('s','exec')}
    if op == 'm0': return {('s','m0')}
    return set()

class Ins:
    def __init__(self, text):
        self.text = text
        t = text.split(';')[0].strip()
        self.label = None
        self.op = None
        self.defs = set(); self.uses = set()
        if not t: return
        if t.endswith(':'):
            self.label = t[:-1]; return
        if t.startswith('.'): return
        parts = t.split(None, 1)
        self.op = parts[0]
        rest = parts[1] if len(parts) > 1 else ''
        ops = []; cur=''; depth=0
        for ch in rest:
            if ch=='[' or ch=='(': depth+=1
            if ch==']' or ch==')': depth-=1
            if ch==',' and depth==0:
                ops.append(cur.strip()); cur=''
            else: cur+=ch
        if cur.strip(): ops.append(cur.strip())
        self.mods = ''
        if ops:
            sp = ops[-1].split(None,1)
            if len(sp)>1 and not ops[-1].startswith('hwreg') and not self.op.startswith('s_waitcnt'):
                ops[-1]=sp[0]; self.mods=sp[1]
        self.ops = ops
        o = self.op
        self.mfma = o.startswith('v_mfma')
        self.valu = o.startswith('v_') and not self.mfma
        self.salu = o.startswith('s_')
        self.vmem = o.startswith('global_') or o.startswith('buffer_')
        self.ds = o.startswith('ds_')
        self.dpp = self.valu and ('_dpp' in o)
        self.trans = o.replace('_e32','').replace('_e64','') in TRANS
        self.lane = o.startswith('v_readlane') or o.startswith('v_readfirstlane') or o.startswith('v_writelane')
        self.perm = o.startswith('v_permlane')
        self.ldsdma = ('_lds_' in o) or (self.vmem and ' lds' in (' '+self.mods))
        R = [regs_of(x) for x in ops]
        U = lambda xs: set().union(*xs) if xs else set()
        self.srcC=set(); self.srcAB=set(); self.dppsrc=set(); self.stdata=set()
        if self.mfma:
            self.defs=R[0]; self.srcAB=R[1]|R[2]; self.srcC=R[3]; self.uses=self.srcAB|self.srcC
        elif self.valu:
            if self.perm or o.startswith('v_swap'):
                self.defs=R[0]|R[1]; self.uses=R[0]|R[1]
            elif re.match(r'v_(add|sub|subrev|addc|subb|subbrev)_co_', o) or o.startswith('v_div_scale') or o.startswith('v_mad_u64'):
                self.defs=R[0]|R[1]; self.uses=U(R[2:])
            else:
                self.defs=R[0]; self.uses=U(R[1:])
                if o.startswith('v_fmac') or o.startswith('v_writelane') or o.startswith('v_dot2c') or self.dpp or o.startswith('v_pk_fmac'):
                    self.uses|=R[0]
            if self.dpp: self.dppsrc=R[1]
        elif self.vmem:
            if self.ldsdma:
                self.uses=U(R)|{('s','m0')}
            elif '_load_' in o:
                self.defs=R[0]; self.uses=U(R[1:])
            elif '_atomic_' in o and 'sc0' in self.mods:
                self.defs=R[0]; self.uses=U(R[1:])
            else:
                self.uses=U(R)
                if o.endswith('x3') or o.endswith('x4'):
                    self.stdata = R[1] if o.startswith('global_') else R[0]
        elif self.ds:
            if o.startswith('ds_read') or 'permute' in o or 'swizzle' in o:
                self.defs=R[0]; self.uses=U(R[1:])
            else: self.uses=U(R)
        elif self.salu:
            if o.startswith('s_cmp') or o.startswith('s_cbranch') or o.startswith('s_waitcnt') or o in('s_nop','s_barrier','s_branch','s_endpgm','s_sleep','s_setprio'):
                self.uses=U(R)
            else:
                self.defs=R[0] if R else set(); self.uses=U(R[1:])
                if 'saveexec' in o: self.defs|={('s','exec')}
    def states(self):
        if self.op is None: return 0
        if self.op=='s_nop': return int(self.ops[0])+1
        return 1

def vonly(s): return {r for r in s if r[0] in 'va'}
def sonly(s): return {r for r in s if r[0]=='s'}

def need(p, c):
    n=0
    if p.valu:
        sd=sonly(p.defs); vd=vonly(p.defs)
        if sd:
            if c.vmem and (sd & c.uses): n=max(n,5)
            if c.valu and (sd & c.uses): n=max(n,4 if c.lane else 2)
            if c.salu and (sd & c.uses): n=max(n,1)
        if vd:
            if c.dpp and (vd & c.dppsrc): n=max(n,2)
            if c.lane and (vd & c.uses): n=max(n,1)
            if c.perm and (vd & c.uses): n=max(n,2)
            if c.mfma and (vd & c.uses): n=max(n,2)
            if p.trans and c.valu and (vd & c.uses): n=max(n,1)
    if p.mfma:
        passes = 8 if '32x32' in p.op else 4
        big = {4:8, 8:12}[passes]
        if c.mfma:
            if p.defs & c.srcAB: n=max(n,big)
            if p.defs & c.srcC and p.defs!=c.srcC: n=max(n,big-2)
            if p.defs & c.defs and p.defs!=c.srcC: n=max(n,big)
        elif (c.valu or c.vmem or c.ds) and (p.defs & (c.uses|c.defs)): n=max(n,big)
        if c.valu and (p.srcC & c.defs): n=max(n,{4:3,8:7}[passes])
    if p.salu and ('s','m0') in p.defs and c.op and (c.ldsdma): n=max(n,1)
    if p.vmem and p.stdata and c.op and (p.stdata & c.defs): n=max(n,2)
    return n

class Asm:
    def __init__(self): self.L=[]
    def __call__(self, s):
        for line in s.split('\n'):
            line=line.strip()
            if line: self.L.append(line)
    def finalize(self):
        ins=[Ins(x) for x in self.L]
        changed=True; total=0
        while changed:
            changed=False
            lab={x.label:i for i,x in enumerate(ins) if x.label}
            br={}
            for i,x in enumerate(ins):
                if x.op and (x.op.startswith('s_cbranch') or x.op=='s_branch'):
                    br.setdefault(lab[x.ops[0]],[]).append(i)
            def preds(i):
                out=[]
                if i>0 and ins[i-1].op not in('s_branch','s_endpgm'): out.append(i-1)
                out+=br.get(i,[])
                return out
            extra={}
            for i,c in enumerate(ins):
                if c.op is None or c.op in('s_nop',): continue
                worst=0
                stack=[(p,0) for p in preds(i)]
                seen={}
                while stack:
                    j,d=stack.pop()
                    if d>=12: continue
                    if seen.get(j,99)<=d: continue
                    seen[j]=d
                    p=ins[j]
                    if p.op:
                        k=need(p,c)
                        if k>d: worst=max(worst,k-d)
                    for q in preds(j): stack.append((q,d+p.states()+extra.get(j,0)))
                if worst:
                    extra[i]=worst
            if extra:
                changed=True; total+=len(extra)
                new=[]
                for i,c in enumerate(ins):
                    if i in extra: new.append(Ins(f's_nop {extra[i]-1}'))
                    new.append(c)
                ins=new
        self.nops=total
        out=[]
        for x in ins:
            out.append(x.text if (x.label or x.op is None) else '    '+x.text)
        return '\n'.join(out)+'\n'
```

```python
import sys, struct
from emit import Asm

KNAME = "adaLN_cond__mha_block_cached__glu_gated_bilinear__decode_kernel"

def f2u(x): return struct.unpack('<I', struct.pack('<f', x))[0]

WS_REC = 0x00000
WS_MOD = 0x40000
WS_Q   = 0x44000
WS_CNT = 0x48000
WS_ATT = 0x50000
WS_YP  = 0x60000
WS_STAMP = 0x100000
L_SLAB = 16384
L_DOWN = L_SLAB + 65536
L_ACT  = 0
ACT_B  = 1088
L_QBUF = L_ACT + 2304
L_EO   = L_QBUF + 256
L_EML  = L_EO + 8192
L_GU   = L_EML + 64
L_X2   = L_GU + 256
L_END  = L_X2 + 2048
LDS_BYTES = 112*1024
assert L_END <= L_SLAB and L_DOWN + 32768 <= LDS_BYTES

sX, sK, sV, sWQ, sWO, sBX, sWG, sWU = 8, 10, 12, 14, 16, 18, 20, 22
sWD, sC, sWM, sOUT, sDBG, sWS = 24, 26, 28, 30, 32, 34
sWAVE = 3
sKT, sVT, sKB, sVB, sCNT = 36, 38, 40, 42, 44
sAT, sNEXT, sIDX, sOKCLR = 46, 47, 48, 49
sG = 50
sT0, sT1, sT2, sT3 = 4, 5, 6, 7
sSPIN = 52
sLOG2E, sSCALE, sHI = 53, 54, 55
sM0, sM1, sM2, sM3 = 56, 58, 60, 62
sBH, sB, sH = 64, 65, 66
sRED = 67
sSENT = 68
sROLE = 69
sSTAMP = 72
def sp(r): return f"s[{r}:{r+1}]"

vLane = 0
vKo, vVo = 4, 6
vMask = 8
vMl, vL = 12, 13
vO = 16
vQB = 20
vS = 36
vP = 52
vBt = 56
vT = 64
vK = 128
vV = 192
def v(r): return f"v{r}"
def vr(r, n): return f"v[{r}:{r+n-1}]"
DPPALL = "row_mask:0xf bank_mask:0xf"

def gen(stamps=False, spin=1<<17, ldflags='nt', dbgmode=False):
    A = Asm()
    uid = [0]
    def lab(p):
        uid[0] += 1
        return f"L_{p}_{uid[0]}"
    def stamp(i):
        if stamps:
            A(f"s_memrealtime s[88:89]\ns_waitcnt lgkmcnt(0)\ns_mov_b32 s{sSTAMP+i}, s88")
    def addbase(dst, src, off_s=None, off_imm=None):
        if off_s is not None:
            A(f"s_add_u32 s{dst}, s{src}, s{off_s}\ns_addc_u32 s{dst+1}, s{src+1}, 0")
        else:
            A(f"s_add_u32 s{dst}, s{src}, {off_imm}\ns_addc_u32 s{dst+1}, s{src+1}, 0")
    def spin_begin():
        A(f"s_mov_b32 s{sSPIN}, {spin}")
        l = lab("spin"); A(f"{l}:")
        return l
    def spin_end(l, code):
        d = lab("spindone")
        A(f"s_cbranch_vccz {d}")
        A(f"s_sub_u32 s{sSPIN}, s{sSPIN}, 1\ns_cmp_lg_u32 s{sSPIN}, 0\ns_cbranch_scc1 {l}")
        if dbgmode:
            A(f"v_mov_b32 v1, {200+4*(code%8)}\nv_mov_b32 v2, {code}\nglobal_store_dword v1, v2, {sp(sDBG)} sc1")
        A(f"{d}:")
    def check_sent(regs, tmp):
        regs = list(regs)
        if len(regs) == 1:
            A(f"v_cmp_eq_u32 vcc, -1, {v(regs[0])}"); return
        if len(regs) == 2:
            A(f"v_max_u32 {v(tmp)}, {v(regs[0])}, {v(regs[1])}")
        else:
            A(f"v_max3_u32 {v(tmp)}, {v(regs[0])}, {v(regs[1])}, {v(regs[2])}")
            rest = regs[3:]
            while len(rest) >= 2:
                A(f"v_max3_u32 {v(tmp)}, {v(tmp)}, {v(rest[0])}, {v(rest[1])}"); rest = rest[2:]
            if rest: A(f"v_max_u32 {v(tmp)}, {v(tmp)}, {v(rest[0])}")
        A(f"v_cmp_eq_u32 vcc, -1, {v(tmp)}")
    def sanitize(regs):
        for r in regs: A(f"v_min_u32 {v(r)}, -2, {v(r)}")
    def unpack(src, lo, hi):
        A(f"v_lshlrev_b32 {v(lo)}, 16, {v(src)}\nv_and_b32 {v(hi)}, s{sHI}, {v(src)}")
    def round_pairs(regs, tmp):
        regs = list(regs)
        for i in range(0, len(regs), 2):
            A(f"v_cvt_pk_bf16_f32 {v(tmp+(i//2)%2)}, {v(regs[i])}, {v(regs[i+1])}")
            unpack(tmp+(i//2)%2, regs[i], regs[i+1])
    def round1(r):
        A(f"v_cvt_pk_bf16_f32 {v(r)}, {v(r)}, {v(r)}\nv_and_b32 {v(r)}, s{sHI}, {v(r)}")
    def wave_reduce(op, r, sdst, skipquad=False):
        steps = [8, 4] if skipquad else [8, 4, 2, 1]
        for s in steps:
            A(f"{op}_dpp {v(r)}, {v(r)}, {v(r)} row_ror:{s} {DPPALL}")
        A(f"{op}_dpp {v(r)}, {v(r)}, {v(r)} row_bcast:15 row_mask:0xa bank_mask:0xf")
        A(f"{op}_dpp {v(r)}, {v(r)}, {v(r)} row_bcast:31 row_mask:0xc bank_mask:0xf")
        A(f"v_readlane_b32 s{sdst}, {v(r)}, 63")
    def layernorm8(x, out, t):
        A(f"v_add_f32 {v(t)}, {v(x)}, {v(x+1)}")
        for i in range(2, 8): A(f"v_add_f32 {v(t)}, {v(t)}, {v(x+i)}")
        wave_reduce("v_add_f32", t, sRED)
        A(f"v_mov_b32 {v(t+1)}, {f2u(1.0/512):#x}\nv_mul_f32 {v(t+1)}, s{sRED}, {v(t+1)}")
        for i in range(8): A(f"v_sub_f32 {v(out+i)}, {v(x+i)}, {v(t+1)}")
        A(f"v_mul_f32 {v(t)}, {v(out)}, {v(out)}")
        for i in range(1, 8): A(f"v_fmac_f32 {v(t)}, {v(out+i)}, {v(out+i)}")
        wave_reduce("v_add_f32", t, sRED)
        A(f"v_mov_b32 {v(t+2)}, {f2u(1.0/512):#x}\nv_mul_f32 {v(t+2)}, s{sRED}, {v(t+2)}")
        round1(t+1); round1(t+2)
        A(f"v_add_f32 {v(t+2)}, {f2u(1e-5):#x}, {v(t+2)}"); round1(t+2)
        A(f"v_sqrt_f32 {v(t+2)}, {v(t+2)}"); round1(t+2)
        A(f"v_rcp_f32 {v(t+2)}, {v(t+2)}")
        for i in range(8): A(f"v_sub_f32 {v(out+i)}, {v(x+i)}, {v(t+1)}")
        round_pairs(range(out, out+8), t)
        for i in range(8): A(f"v_mul_f32 {v(out+i)}, {v(out+i)}, {v(t+2)}")
        round_pairs(range(out, out+8), t)
    def modulate(ln, cc, ss, t, dst):
        c8 = t; s8 = t+8; tt = t+16
        for i in range(4): unpack(cc+i, c8+2*i, c8+2*i+1)
        for i in range(4): unpack(ss+i, s8+2*i, s8+2*i+1)
        for i in range(8): A(f"v_add_f32 {v(c8+i)}, 1.0, {v(c8+i)}")
        round_pairs(range(c8, c8+8), tt)
        for i in range(8): A(f"v_mul_f32 {v(c8+i)}, {v(c8+i)}, {v(ln+i)}")
        round_pairs(range(c8, c8+8), tt)
        for i in range(8): A(f"v_add_f32 {v(c8+i)}, {v(c8+i)}, {v(s8+i)}")
        for i in range(4): A(f"v_cvt_pk_bf16_f32 {v(dst+i)}, {v(c8+2*i)}, {v(c8+2*i+1)}")

    def kv_load(kv, i):
        base = sp(sKT) if kv == 0 else sp(sVT)
        vo = (vKo if kv == 0 else vVo) + i//8
        r = (vK if kv == 0 else vV) + 4*i
        A(f"global_load_dwordx4 {vr(r,4)}, {v(vo)}, {base} offset:{(i%8)*1024-4096} {ldflags}")
    def set_tile(sidx):
        A(f"s_lshl_b32 s{sT0}, s{sidx}, 14")
        addbase(sKT, sKB, off_s=sT0); addbase(sVT, sVB, off_s=sT0)
    def prefetch():
        for kv in range(2):
            for i in range(16): kv_load(kv, i)

    def dma(vo, n_lds_off_s):
        A(f"global_load_lds_dwordx4 {v(vo)}, {sp(sG)} {ldflags}")
    def slab_nat(ptr, stride, colbytes_s, wperm=False):
        A(f"v_lshrrev_b32 v3, 3, {v(vLane)}")
        if wperm:
            A(f"v_and_b32 v1, 3, v3\nv_lshlrev_b32 v1, 3, v1\nv_lshrrev_b32 v2, 2, v3\nv_add_u32 v1, v1, v2")
        else:
            A(f"v_mov_b32 v1, v3")
        A(f"v_mul_u32_u24 v1, {stride}, v1")
        A(f"v_and_b32 v3, 2, v3\nv_and_b32 v2, 7, {v(vLane)}\nv_xor_b32 v2, v2, v3\nv_lshlrev_b32 v2, 4, v2")
        A(f"v_add_u32 v1, v1, v2\nv_xor_b32 v2, 64, v1")
        assert stride % 128 == 0
        if wperm:
            A(f"s_mul_i32 s{sT0}, s{sWAVE}, {64*stride}")
        else:
            A(f"s_mul_i32 s{sT0}, s{sWAVE}, {64*stride}")
        A(f"s_add_u32 s{sT0}, s{sT0}, s{colbytes_s}")
        addbase(sG, ptr, off_s=sT0)
        A(f"s_lshl_b32 s{sT1}, s{sWAVE}, 13")
        prev = 0
        for n in range(8):
            row = (32*(n >> 2) + 2*(n & 3)) if wperm else 8*n
            if row != prev: addbase(sG, sG, off_imm=(row-prev)*stride); prev = row
            A(f"s_add_u32 m0, s{sT1}, {L_SLAB + n*1024}")
            dma(1 + (n & 1), None)
    def slab_mlp():
        A(f"v_lshrrev_b32 v3, 2, {v(vLane)}\nv_mul_u32_u24 v1, 3584, v3")
        A(f"v_lshrrev_b32 v3, 2, v3\nv_and_b32 v3, 2, v3\nv_and_b32 v2, 3, {v(vLane)}\nv_xor_b32 v2, v2, v3\nv_lshlrev_b32 v2, 4, v2\nv_add_u32 v1, v1, v2")
        A(f"s_mul_i32 s{sT0}, s{sWAVE}, {64*3584}\ns_lshl_b32 s{sT2}, s{sIDX}, 6\ns_add_u32 s{sT0}, s{sT0}, s{sT2}")
        A(f"s_lshl_b32 s{sT1}, s{sWAVE}, 12")
        for m, ptr in enumerate((sWG, sWU)):
            addbase(sG, ptr, off_s=sT0)
            for n in range(4):
                if n: addbase(sG, sG, off_imm=16*3584)
                A(f"s_add_u32 m0, s{sT1}, {L_SLAB + m*32768 + n*1024}")
                dma(1, None)
        A(f"s_lshl_b32 s{sT0}, s{sIDX}, 15\ns_add_u32 s{sT0}, s{sT0}, s{sT1}")
        addbase(sG, sWD, off_s=sT0)
        A(f"s_and_b32 s{sT2}, s{sWAVE}, 2\ns_lshl_b32 s{sT2}, s{sT2}, 6")
        A(f"v_lshlrev_b32 v3, 4, {v(vLane)}\nv_xor_b32 v3, s{sT2}, v3")
        for n in range(4):
            if n: addbase(sG, sG, off_imm=1024)
            A(f"v_xor_b32 v2, {n*32}, v3")
            A(f"s_add_u32 m0, s{sT1}, {L_DOWN + n*1024}")
            dma(2, None)

    def gemv_addr(va, vb, rowb=128):
        A(f"v_lshrrev_b32 v1, 4, {v(vLane)}")
        A(f"v_bfe_u32 v2, {v(vLane)}, 2, 2")
        A(f"v_lshl_add_u32 v3, v1, 3, v2")
        if rowb == 128:
            A(f"v_lshlrev_b32 {v(va)}, 7, v3")
            A(f"v_lshrrev_b32 v2, 1, v2\nv_and_b32 v3, 1, v1\nv_lshl_add_u32 v2, v3, 1, v2")
            A(f"v_xor_b32 v2, s{sWAVE}, v2")
        else:
            A(f"v_lshlrev_b32 {v(va)}, 6, v3")
            A(f"s_and_b32 s{sT0}, s{sWAVE}, 1\ns_lshr_b32 s{sT1}, s{sWAVE}, 1\ns_lshl_b32 s{sT1}, s{sT1}, 15")
            A(f"v_and_b32 v2, 1, v1\nv_xor_b32 v2, s{sT0}, v2\nv_add_u32 {v(va)}, s{sT1}, {v(va)}")
        A(f"v_lshl_add_u32 {v(va)}, v2, 5, {v(va)}")
        A(f"v_and_b32 v2, 3, {v(vLane)}\nv_lshl_add_u32 {v(va)}, v2, 3, {v(va)}\nv_add_u32 {v(va)}, {L_SLAB}, {v(va)}")
        A(f"v_and_b32 v2, 1, {v(vLane)}\nv_mul_u32_u24 v2, {ACT_B}, v2\nv_lshl_add_u32 {v(vb)}, v1, 4, v2\nv_add_u32 {v(vb)}, {L_ACT}, {v(vb)}")
    def rdA(dst, va, k, rowb=128):
        A(f"ds_read_b64_tr_b16 {vr(dst,2)}, {v(va)} offset:{k*32*rowb}")
        A(f"ds_read_b64_tr_b16 {vr(dst+2,2)}, {v(va)} offset:{k*32*rowb + 4*rowb}")
    def rdB(dst, vb, k):
        A(f"ds_read_b128 {vr(dst,4)}, {v(vb)} offset:{k*64}")
    def gemv_chunked(acc, va, vb, fr):
        def rd(c):
            for k in range(4):
                rdA(fr + (c & 1)*32 + 4*k, va, 4*c+k); rdB(fr + (c & 1)*32 + 16 + 4*k, vb, 4*c+k)
        rd(0)
        for c in range(4):
            if c < 3:
                rd(c+1); A("s_waitcnt lgkmcnt(12)")
            else:
                A("s_waitcnt lgkmcnt(0)")
            for k in range(4):
                a = fr + (c & 1)*32 + 4*k; b = a + 16
                A(f"v_mfma_f32_16x16x32_bf16 {vr(acc,4)}, {vr(a,4)}, {vr(b,4)}, {'0' if (c==0 and k==0) else vr(acc,4)}")
    def gemv_pre(acc, vb, frA, frB):
        for k in range(16): rdB(frB + 4*k, vb, k)
        for k in range(16):
            if k % 4 == 0: A(f"s_waitcnt lgkmcnt({12-k})")
            A(f"v_mfma_f32_16x16x32_bf16 {vr(acc,4)}, {vr(frA+4*k,4)}, {vr(frB+4*k,4)}, {'0' if k==0 else vr(acc,4)}")
    EX_J2 = "0x0003000300030003"
    def exec_j2():
        A(f"s_mov_b32 exec_lo, 0x00030003\ns_mov_b32 exec_hi, 0x00030003")
    def exec_all(): A("s_mov_b64 exec, -1")
    def out_off(dst, bstride, esz):
        A(f"v_and_b32 v1, 1, {v(vLane)}\nv_mul_u32_u24 v1, {bstride}, v1\nv_lshrrev_b32 v2, 4, {v(vLane)}\nv_mul_u32_u24 v2, {4*esz}, v2")
        A(f"s_mul_i32 s{sT0}, s{sWAVE}, {16*esz}\nv_add3_u32 {v(dst)}, v1, v2, s{sT0}")

    hdr = f"""; fused adaLN -> MHA decode (flash-decoding, dynamic tile queue) -> wo -> adaLN -> GLU, one persistent launch
; @launch grid=(256,1,1) block=(512,1,1) lds={LDS_BYTES}
.amdgcn_target "amdgcn-amd-amdhsa--gfx950"
.text
.globl {KNAME}
.p2align 8
.type {KNAME},@function
{KNAME}:
"""
    A("s_cmp_ge_u32 s2, 256\ns_cbranch_scc1 L_end")
    A("s_load_dwordx16 s[8:23], s[0:1], 0\ns_load_dwordx8 s[24:31], s[0:1], 64\ns_load_dwordx4 s[32:35], s[0:1], 96")
    A(f"v_lshrrev_b32 v1, 6, v0\nv_and_b32 {v(vLane)}, 63, v0\nv_readfirstlane_b32 s{sWAVE}, v1")
    A(f"s_mov_b32 s{sLOG2E}, {f2u(1.4426950408889634):#x}\ns_mov_b32 s{sSCALE}, {f2u(128**-0.5):#x}\ns_mov_b32 s{sHI}, 0xffff0000")
    A(f"s_lshr_b32 s{sBH}, s2, 2\ns_lshr_b32 s{sB}, s2, 7\ns_and_b32 s{sH}, s{sBH}, 31\ns_mov_b32 s{sOKCLR}, 0")
    A(f"v_lshlrev_b32 {v(vVo)}, 4, {v(vLane)}")
    A(f"v_and_b32 v1, 12, {v(vLane)}\nv_lshlrev_b32 v1, 6, v1\nv_lshrrev_b32 v2, 4, {v(vLane)}\nv_lshl_add_u32 v1, v2, 6, v1")
    A(f"v_and_b32 v2, 3, {v(vLane)}\nv_lshl_add_u32 {v(vKo)}, v2, 4, v1")
    A(f"v_add_u32 {v(vKo)}, 4096, {v(vKo)}\nv_add_u32 {v(vVo)}, 4096, {v(vVo)}")
    A(f"v_add_u32 {v(vKo+1)}, 8192, {v(vKo)}\nv_add_u32 {v(vVo+1)}, 8192, {v(vVo)}")
    A("s_waitcnt lgkmcnt(0)")
    stamp(0)
    A(f"s_lshl_b32 s{sT0}, s{sBH}, 23")
    addbase(sKB, sK, off_s=sT0); addbase(sVB, sV, off_s=sT0)
    A(f"s_lshl_b32 s{sT0}, s{sBH}, 8\ns_add_u32 s{sT0}, s{sT0}, {WS_CNT}")
    addbase(sCNT, sWS, off_s=sT0)
    A(f"s_and_b32 s{sT1}, s2, 3\ns_lshl_b32 s{sT1}, s{sT1}, 3\ns_add_u32 s{sNEXT}, s{sT1}, s{sWAVE}")
    A(f"s_sub_u32 s{sAT}, s{sNEXT}, 32")
    set_tile(sNEXT)
    A("s_cmp_lt_u32 s2, 16\ns_cbranch_scc1 L_P1a\ns_cmp_lt_u32 s2, 80\ns_cbranch_scc1 L_P2\ns_cmp_lt_u32 s2, 112\ns_cbranch_scc1 L_P1b")
    A("s_cmp_lt_u32 s2, 176\ns_cbranch_scc1 L_W0\ns_cmp_lt_u32 s2, 232\ns_cbranch_scc1 L_M0\ns_branch L_N0")

    def clear_rec():
        A(f"v_mov_b32 {v(vT)}, -1\nv_mov_b32 {v(vT+1)}, -1\nv_mov_b32 {v(vT+2)}, -1\nv_mov_b32 {v(vT+3)}, -1")
        A(f"s_lshl_b32 s{sT0}, s2, 10\nv_lshl_add_u32 {v(vT+4)}, {v(vLane)}, 4, s{sT0}")
        A(f"global_store_dwordx4 {v(vT+4)}, {vr(vT,4)}, {sp(sWS)} sc1")
        return 1
    def late_count():
        A(f"v_mov_b32 v1, 128\nv_mov_b32 v2, 1\ns_mov_b64 exec, 1\nglobal_atomic_add v1, v2, {sp(sDBG)} sc1\ns_mov_b64 exec, -1")
    def set_flag(sbyte):
        A(f"v_mov_b32 v1, s{sbyte}\nv_mov_b32 v2, 1\ns_mov_b64 exec, 1\nglobal_store_byte v1, v2, {sp(sDBG)} sc1\ns_mov_b64 exec, -1")
    def clear_bf16_out(base, bstride):
        A(f"v_lshrrev_b32 v1, 5, {v(vLane)}\nv_mul_u32_u24 v1, {bstride}, v1\nv_and_b32 v2, 31, {v(vLane)}\nv_lshl_add_u32 v1, v2, 2, v1")
        A(f"s_lshl_b32 s{sT0}, s{sIDX}, 7\ns_add_u32 s{sT0}, s{sT0}, {base}\nv_add_u32 v1, s{sT0}, v1")
        A(f"global_store_dword v1, {v(vT)}, {sp(sWS)} sc1")
        return 1
    def store_bf16_out(acc, base, bstride):
        out_off(vT, bstride, 2)
        A(f"s_lshl_b32 s{sT0}, s{sIDX}, 7\ns_add_u32 s{sT0}, s{sT0}, {base}\nv_add_u32 {v(vT)}, s{sT0}, {v(vT)}")
        A(f"v_cvt_pk_bf16_f32 {v(vT+2)}, {v(acc)}, {v(acc+1)}\nv_cvt_pk_bf16_f32 {v(vT+3)}, {v(acc+2)}, {v(acc+3)}")
        sanitize([vT+2, vT+3])
        exec_j2()
        A(f"global_store_dwordx2 {v(vT)}, {vr(vT+2,2)}, {sp(sWS)} sc1")
        exec_all()

    A(f"L_P1a:\ns_mov_b32 s{sIDX}, s2\ns_branch L_P1")
    A(f"L_P1b:\ns_sub_u32 s{sIDX}, s2, 64")
    A("L_P1:")
    A(f"s_mov_b32 s{sROLE}, 0")
    A(f"s_cmp_lg_u32 s{sWAVE}, 0\ns_cbranch_scc1 L_P1_noclr")
    clear_rec(); clear_bf16_out(WS_MOD, 6144)
    A("L_P1_noclr:")
    A(f"s_lshl_b32 s{sT0}, s{sWAVE}, 8\nv_lshl_add_u32 {v(vT+5)}, {v(vLane)}, 2, s{sT0}")
    A(f"global_load_dword {v(vT+6)}, {v(vT+5)}, {sp(sC)}")
    A(f"s_lshl_b32 s{sT2}, s{sIDX}, 7")
    slab_nat(sWM, 6144, sT2)
    def silu_part():
        unpack(vT+6, vT+8, vT+9)
        for r in (vT+8, vT+9):
            A(f"v_mul_f32 {v(r+2)}, s{sLOG2E}, {v(r)}\nv_exp_f32 {v(r+2)}, -{v(r+2)}\nv_add_f32 {v(r+2)}, 1.0, {v(r+2)}\nv_rcp_f32 {v(r+2)}, {v(r+2)}\nv_mul_f32 {v(r)}, {v(r)}, {v(r+2)}")
        A(f"v_cvt_pk_bf16_f32 {v(vT+8)}, {v(vT+8)}, {v(vT+9)}")
        A(f"s_lshr_b32 s{sT0}, s{sWAVE}, 2\ns_mul_i32 s{sT0}, s{sT0}, {ACT_B-1024}\ns_add_u32 s{sT0}, s{sT0}, {L_ACT}")
        A(f"v_add_u32 {v(vT+5)}, s{sT0}, {v(vT+5)}\nds_write_b32 {v(vT+5)}, {v(vT+8)}")
    A(f"s_cmp_lg_u32 s{sWAVE}, 0\ns_cbranch_scc1 L_P1_np")
    A("s_waitcnt vmcnt(9)")
    A(f"s_cmp_ge_u32 s2, 16\ns_cbranch_scc1 L_P1_nf")
    set_flag(2)
    A("L_P1_nf:")
    late_count()
    A("s_waitcnt vmcnt(9)")
    silu_part()
    A("s_waitcnt vmcnt(1)\ns_branch L_P1_bar")
    A("L_P1_np:")
    prefetch()
    A("s_waitcnt vmcnt(40)")
    silu_part()
    A("s_waitcnt vmcnt(32)")
    A("L_P1_bar:")
    A("s_waitcnt lgkmcnt(0)\ns_barrier")
    stamp(1)
    A(f"s_cmp_ge_u32 s{sWAVE}, 4\ns_cbranch_scc1 L_qbar")
    gemv_addr(vS+4, vS+5)
    gemv_chunked(vS, vS+4, vS+5, vT)
    store_bf16_out(vS, WS_MOD, 6144)
    stamp(2)
    A(f"s_cmp_eq_u32 s{sWAVE}, 0\ns_cbranch_scc1 L_qpoll\ns_branch L_qbar")

    A(f"L_P2:\ns_sub_u32 s{sIDX}, s2, 16\ns_mov_b32 s{sROLE}, 0")
    A(f"s_cmp_lg_u32 s{sWAVE}, 0\ns_cbranch_scc1 L_P2_noclr")
    clear_rec(); clear_bf16_out(WS_Q, 8192)
    A(f"s_and_b32 s{sT0}, s{sIDX}, 1\ns_lshl_b32 s{sT0}, s{sT0}, 5\ns_lshr_b32 s{sT1}, s{sIDX}, 1\ns_add_u32 s{sT0}, s{sT0}, s{sT1}\ns_lshl_b32 s{sT0}, s{sT0}, 8\ns_add_u32 s{sT0}, s{sT0}, {WS_CNT}")
    A(f"v_mov_b32 v1, s{sT0}\nv_mov_b32 v2, 0\ns_mov_b64 exec, 1\nglobal_store_dword v1, v2, {sp(sWS)} sc1\ns_mov_b64 exec, -1")
    A("L_P2_noclr:")
    A(f"s_and_b32 s{sT0}, s{sWAVE}, 1\ns_lshl_b32 s{sT0}, s{sT0}, 10\nv_lshl_add_u32 {v(vT+5)}, {v(vLane)}, 4, s{sT0}")
    A(f"global_load_dwordx4 {vr(vT+8,4)}, {v(vT+5)}, {sp(sX)}")
    A(f"s_lshl_b32 s{sT2}, s{sIDX}, 7")
    slab_nat(sWQ, 8192, sT2)
    A(f"s_cmp_ge_u32 s{sWAVE}, 2\ns_cbranch_scc1 L_P2_np")
    A(f"s_cmp_lg_u32 s{sWAVE}, 0\ns_cbranch_scc1 L_P2_nf")
    A("s_waitcnt vmcnt(9)")
    set_flag(2)
    late_count()
    A("L_P2_nf:")
    A("s_waitcnt vmcnt(8)")
    X8 = vT+12; LN = vT+20; TT = vT+28
    for i in range(4): unpack(vT+8+i, X8+2*i, X8+2*i+1)
    layernorm8(X8, LN, TT)
    A(f"v_and_b32 v3, 3, {v(vLane)}\nv_lshlrev_b32 v3, 2, v3\ns_mov_b32 s{sT3}, 0x01010101")
    l = spin_begin()
    A(f"global_load_dword {v(TT)}, v3, {sp(sDBG)} sc1\ns_waitcnt vmcnt(0)\nv_cmp_ne_u32 vcc, s{sT3}, {v(TT)}")
    spin_end(l, 1)
    stamp(1)
    A(f"s_mul_i32 s{sT0}, s{sWAVE}, 6144\ns_add_u32 s{sT0}, s{sT0}, {WS_MOD}\nv_lshl_add_u32 v3, {v(vLane)}, 4, s{sT0}")
    SA = vT+32; CA = vT+36
    l = spin_begin()
    A(f"global_load_dwordx4 {vr(SA,4)}, v3, {sp(sWS)} sc1\nglobal_load_dwordx4 {vr(CA,4)}, v3, {sp(sWS)} offset:1024 sc1\ns_waitcnt vmcnt(0)")
    check_sent(range(SA, SA+8), TT)
    spin_end(l, 2)
    stamp(2)
    modulate(LN, CA, SA, vT+40, vT+8)
    A(f"s_mul_i32 s{sT0}, s{sWAVE}, {ACT_B}\ns_add_u32 s{sT0}, s{sT0}, {L_ACT}\nv_lshl_add_u32 v3, {v(vLane)}, 4, s{sT0}")
    A(f"ds_write_b128 v3, {vr(vT+8,4)}")
    A("s_branch L_P2_bar")
    A("L_P2_np:")
    prefetch()
    A("s_waitcnt vmcnt(32)")
    A("L_P2_bar:")
    A("s_waitcnt lgkmcnt(0)\ns_barrier")
    A(f"s_cmp_ge_u32 s{sWAVE}, 4\ns_cbranch_scc1 L_qbar")
    gemv_addr(vS+4, vS+5)
    gemv_chunked(vS, vS+4, vS+5, vT)
    store_bf16_out(vS, WS_Q, 8192)
    stamp(3)
    A(f"s_cmp_eq_u32 s{sWAVE}, 0\ns_cbranch_scc1 L_qpoll")
    A(f"s_cmp_lg_u32 s{sWAVE}, 1\ns_cbranch_scc1 L_qbar")
    prefetch()
    A("s_branch L_qbar")

    A(f"L_W0:\ns_sub_u32 s{sIDX}, s2, 112\ns_mov_b32 s{sROLE}, 1")
    A(f"s_cmp_lg_u32 s{sWAVE}, 0\ns_cbranch_scc1 L_slabs")
    clear_rec()
    A(f"s_lshr_b32 s{sT0}, s{sIDX}, 3\ns_lshl_b32 s{sT0}, s{sT0}, 12\ns_and_b32 s{sT1}, s{sIDX}, 7\ns_lshl_b32 s{sT1}, s{sT1}, 8\ns_add_u32 s{sT0}, s{sT0}, s{sT1}\ns_add_u32 s{sT0}, s{sT0}, {WS_ATT}")
    A(f"v_bfe_u32 v1, {v(vLane)}, 4, 1\nv_lshlrev_b32 v1, 11, v1\nv_and_b32 v2, 15, {v(vLane)}\nv_lshlrev_b32 v2, 4, v2\nv_add3_u32 v1, v1, v2, s{sT0}")
    A(f"global_store_dwordx4 v1, {vr(vT,4)}, {sp(sWS)} sc1")
    A("s_branch L_clrdone")
    A(f"L_M0:\ns_sub_u32 s{sIDX}, s2, 176\ns_mov_b32 s{sROLE}, 2")
    A(f"s_cmp_lg_u32 s{sWAVE}, 0\ns_cbranch_scc1 L_slabs")
    clear_rec()
    A(f"s_lshl_b32 s{sT0}, s{sIDX}, 12\ns_add_u32 s{sT0}, s{sT0}, {WS_YP}\nv_lshl_add_u32 v1, {v(vLane)}, 4, s{sT0}")
    for i in range(4): A(f"global_store_dwordx4 v1, {vr(vT,4)}, {sp(sWS)} offset:{i*1024} sc1")
    A("s_branch L_clrdone")
    A(f"L_N0:\ns_mov_b32 s{sROLE}, 0\ns_mov_b32 s{sIDX}, 0")
    A(f"s_cmp_lg_u32 s{sWAVE}, 0\ns_cbranch_scc1 L_slabs")
    clear_rec()
    A("L_clrdone:")
    A("s_waitcnt vmcnt(0)")
    late_count()

    A("L_qpoll:")
    A(f"s_lshl_b32 s{sT0}, s{sH}, 1\ns_add_u32 s{sT0}, s{sT0}, 16\nv_mov_b32 v3, s{sT0}\ns_movk_i32 s{sT3}, 0x0101")
    l = spin_begin()
    A(f"global_load_ushort {v(vT)}, v3, {sp(sDBG)} sc1\ns_waitcnt vmcnt(0)\nv_cmp_ne_u32 vcc, s{sT3}, {v(vT)}")
    spin_end(l, 3)
    stamp(4)
    A(f"s_lshl_b32 s{sT0}, s{sB}, 13\ns_lshl_b32 s{sT1}, s{sH}, 8\ns_add_u32 s{sT0}, s{sT0}, s{sT1}\ns_add_u32 s{sT0}, s{sT0}, {WS_Q}")
    A(f"v_lshl_add_u32 v3, {v(vLane)}, 2, s{sT0}\nv_mov_b32 {v(vT+2)}, 128")
    l = spin_begin()
    A(f"global_load_dword {v(vT+1)}, {v(vT+2)}, {sp(sDBG)} sc1\nglobal_load_dword {v(vT)}, v3, {sp(sWS)} sc1\ns_waitcnt vmcnt(0)")
    check_sent([vT], None)
    spin_end(l, 4)
    A(f"v_readfirstlane_b32 s{sOKCLR}, {v(vT+1)}")
    A(f"v_lshlrev_b32 v3, 2, {v(vLane)}\nds_write_b32 v3, {v(vT)} offset:{L_QBUF}")
    stamp(5)
    A("L_slabs:")
    A(f"s_cmp_eq_u32 s{sROLE}, 0\ns_cbranch_scc1 L_pref")
    A(f"s_cmp_eq_u32 s{sROLE}, 2\ns_cbranch_scc1 L_slabM")
    A(f"s_lshr_b32 s{sT2}, s{sIDX}, 3\ns_lshl_b32 s{sT2}, s{sT2}, 19\ns_and_b32 s{sT3}, s{sIDX}, 7\ns_lshl_b32 s{sT3}, s{sT3}, 7\ns_add_u32 s{sT2}, s{sT2}, s{sT3}")
    slab_nat(sWO, 1024, sT2, wperm=True)
    A("s_branch L_pref")
    A("L_slabM:")
    slab_mlp()
    A("L_pref:")
    prefetch()
    A("L_qbar:")
    A("s_waitcnt lgkmcnt(0)\ns_barrier")
    A(f"v_lshrrev_b32 v1, 4, {v(vLane)}\nv_and_b32 v2, 3, {v(vLane)}\nv_lshl_add_u32 v1, v1, 2, v2\nv_lshlrev_b32 v1, 4, v1")
    A(f"ds_read_b128 {vr(vT,4)}, v1 offset:{L_QBUF}")
    A(f"v_bfe_u32 v2, {v(vLane)}, 2, 2")
    for s in range(4): A(f"v_cmp_eq_u32 {sp(sM0+2*s)}, {s}, v2")
    A(f"v_and_b32 v1, 1, {v(vLane)}\nv_mov_b32 v3, 0xffff\nv_lshlrev_b32 v1, 4, v1\nv_lshlrev_b32 v3, v1, v3")
    A(f"v_bfe_u32 v2, {v(vLane)}, 1, 3")
    for r in range(4):
        A(f"v_cmp_eq_u32 vcc, {r}, v2\nv_cndmask_b32 {v(vMask+r)}, 0, v3, vcc")
    A(f"v_mov_b32 {v(vMl)}, 0xff800000\nv_mov_b32 {v(vL)}, 0")
    for r in range(4): A(f"v_mov_b32 {v(vO+r)}, 0")
    A("s_waitcnt lgkmcnt(0)")
    for s in range(4):
        for r in range(4):
            A(f"v_cndmask_b32 {v(vQB+4*s+r)}, 0, {v(vT+r)}, {sp(sM0+2*s)}")
    stamp(6)

    def tile(ld, tag):
        for i in range(16):
            u, s = i >> 2, i & 3
            A(f"s_waitcnt vmcnt({31 if ld else 31-i})")
            A(f"v_mfma_f32_16x16x32_bf16 {vr(vS+4*u,4)}, {vr(vK+4*i,4)}, {vr(vQB+4*s,4)}, {'0' if s==0 else vr(vS+4*u,4)}")
            if ld: kv_load(0, i)
        t = vT
        for u in range(4): A(f"v_mov_b32_dpp {v(t+u)}, {v(vS+4*u)} quad_perm:[0,0,0,0] {DPPALL}")
        for r in range(1, 4):
            for u in range(4):
                A(f"v_add_f32_dpp {v(t+u)}, {v(vS+4*u+r)}, {v(t+u)} quad_perm:[{r},{r},{r},{r}] {DPPALL}")
        round_pairs(range(t, t+4), t+4)
        for u in range(4): A(f"v_mul_f32 {v(t+u)}, s{sSCALE}, {v(t+u)}")
        round_pairs(range(t, t+4), t+4)
        for u in range(4): A(f"v_mul_f32 {v(t+u)}, s{sLOG2E}, {v(t+u)}")
        A(f"v_max3_f32 {v(t+4)}, {v(t)}, {v(t+1)}, {v(t+2)}\nv_max_f32 {v(t+4)}, {v(t+4)}, {v(t+3)}")
        A(f"v_cmp_gt_f32 vcc, {v(t+4)}, {v(vMl)}\ns_cbranch_vccnz L_resc_{tag}")
        A(f"L_cont_{tag}:")
        for u in range(4): A(f"v_sub_f32 {v(t+u)}, {v(t+u)}, {v(vMl)}")
        for u in range(4): A(f"v_exp_f32 {v(t+u)}, {v(t+u)}")
        for u in range(4): A(f"v_cvt_pk_bf16_f32 {v(vP+u)}, {v(t+u)}, {v(t+u)}")
        A(f"v_add_f32 {v(t)}, {v(t)}, {v(t+1)}\nv_add_f32 {v(t+2)}, {v(t+2)}, {v(t+3)}\nv_add_f32 {v(vL)}, {v(vL)}, {v(t)}\nv_add_f32 {v(vL)}, {v(vL)}, {v(t+2)}")
        def mkB(i):
            u, s = i >> 2, i & 3
            for r in range(4):
                A(f"v_and_b32_dpp {v(vBt+4*(i&1)+r)}, {v(vP+u)}, {v(vMask+r)} row_newbcast:{4*s} {DPPALL}")
        mkB(0)
        for i in range(16):
            if i < 15: mkB(i+1)
            A(f"s_waitcnt vmcnt({31 if ld else 15-i})")
            A(f"v_mfma_f32_16x16x32_bf16 {vr(vO,4)}, {vr(vV+4*i,4)}, {vr(vBt+4*(i&1),4)}, {vr(vO,4)}")
            if ld: kv_load(1, i)
    def rescale(tag):
        t = vT
        A(f"L_resc_{tag}:")
        wave_reduce("v_max_f32", t+4, sRED, skipquad=True)
        A(f"v_max_f32 {v(t+5)}, s{sRED}, {v(vMl)}")
        A(f"v_sub_f32 {v(t+4)}, {v(vMl)}, {v(t+5)}\nv_exp_f32 {v(t+4)}, {v(t+4)}\nv_mov_b32 {v(vMl)}, {v(t+5)}")
        for r in range(4): A(f"v_mul_f32 {v(vO+r)}, {v(vO+r)}, {v(t+4)}")
        A(f"v_mul_f32 {v(vL)}, {v(vL)}, {v(t+4)}\ns_branch L_cont_{tag}")
    A("L_loop:")
    A(f"s_waitcnt lgkmcnt(0)\ns_add_u32 s{sNEXT}, s{sAT}, 64\ns_cmp_ge_u32 s{sNEXT}, 512\ns_cbranch_scc1 L_drain")
    set_tile(sNEXT)
    A(f"s_mov_b32 s{sAT}, 1\ns_atomic_add s{sAT}, {sp(sCNT)}, 0 glc")
    tile(True, "a")
    A("s_branch L_loop")
    rescale("a"); rescale("b")
    A("L_drain:")
    stamp(7)
    tile(False, "b")
    stamp(8)
    wave_reduce("v_add_f32", vL, sRED)
    A(f"v_mov_b32 v2, 0.25\nv_mul_f32 {v(vL)}, s{sRED}, v2".replace("0.25", f"{f2u(0.25):#x}"))
    A(f"s_lshl_b32 s{sT0}, s{sWAVE}, 10\nv_lshl_add_u32 v1, {v(vLane)}, 4, s{sT0}\nds_write_b128 v1, {vr(vO,4)} offset:{L_EO}")
    A(f"s_lshl_b32 s{sT0}, s{sWAVE}, 3\nv_mov_b32 v1, s{sT0}\nds_write_b64 v1, {vr(vMl,2)} offset:{L_EML}")
    A(f"s_cmp_lg_u32 s{sWAVE}, 0\ns_cbranch_scc1 L_e1bar\ns_cmp_eq_u32 s{sOKCLR}, 256\ns_cbranch_scc1 L_e1bar")
    A(f"v_mov_b32 v3, 128\ns_movk_i32 s{sT3}, 256")
    l = spin_begin()
    A(f"global_load_dword {v(vT)}, v3, {sp(sDBG)} sc1\ns_waitcnt vmcnt(0)\nv_cmp_ne_u32 vcc, s{sT3}, {v(vT)}")
    spin_end(l, 5)
    A("L_e1bar:")
    A("s_waitcnt lgkmcnt(0)\ns_barrier")
    A(f"s_cmp_lg_u32 s{sWAVE}, 7\ns_cbranch_scc1 L_roles")
    t = vT
    A(f"v_mov_b32 v1, 0")
    for i in range(4): A(f"ds_read_b128 {vr(t+4*i,4)}, v1 offset:{L_EML+16*i}")
    A(f"v_lshlrev_b32 v1, 4, {v(vLane)}")
    for i in range(8): A(f"ds_read_b128 {vr(t+24+4*i,4)}, v1 offset:{L_EO+1024*i}")
    A("s_waitcnt lgkmcnt(8)")
    A(f"v_max3_f32 {v(t+16)}, {v(t)}, {v(t+2)}, {v(t+4)}\nv_max3_f32 {v(t+16)}, {v(t+16)}, {v(t+6)}, {v(t+8)}\nv_max3_f32 {v(t+16)}, {v(t+16)}, {v(t+10)}, {v(t+12)}\nv_max_f32 {v(t+16)}, {v(t+16)}, {v(t+14)}")
    for i in range(8): A(f"v_sub_f32 {v(t+2*i)}, {v(t+2*i)}, {v(t+16)}")
    for i in range(8): A(f"v_exp_f32 {v(t+2*i)}, {v(t+2*i)}")
    A(f"v_mul_f32 {v(t+17)}, {v(t)}, {v(t+1)}")
    for i in range(1, 8): A(f"v_fmac_f32 {v(t+17)}, {v(t+2*i)}, {v(t+2*i+1)}")
    A("s_waitcnt lgkmcnt(0)")
    for r in range(4): A(f"v_mul_f32 {v(t+20+r)}, {v(t)}, {v(t+24+r)}")
    for i in range(1, 8):
        for r in range(4): A(f"v_fmac_f32 {v(t+20+r)}, {v(t+2*i)}, {v(t+24+4*i+r)}")
    sanitize([t+16, t+17, t+20, t+21, t+22, t+23])
    A(f"v_lshrrev_b32 v1, 4, {v(vLane)}\nv_and_b32 v2, 7, {v(vLane)}\nv_lshl_add_u32 v1, v1, 3, v2\ns_lshl_b32 s{sT0}, s2, 10\nv_lshl_add_u32 v1, v1, 4, s{sT0}\nv_mov_b32 v2, s{sT0}")
    A("s_mov_b32 exec_lo, 0x00ff00ff\ns_mov_b32 exec_hi, 0x00ff00ff")
    A(f"global_store_dwordx4 v1, {vr(t+20,4)}, {sp(sWS)} sc1")
    A(f"s_mov_b64 exec, 1\nglobal_store_dwordx2 v2, {vr(t+16,2)}, {sp(sWS)} offset:512 sc1")
    exec_all()
    stamp(9)
    A("L_roles:")
    A(f"s_cmp_eq_u32 s{sROLE}, 0\ns_cbranch_scc1 L_fin\ns_cmp_eq_u32 s{sROLE}, 2\ns_cbranch_scc1 L_M1")

    A(f"s_cmp_ge_u32 s{sWAVE}, 4\ns_cbranch_scc1 L_Wpoll")
    gemv_addr(vS+4, vS+5)
    for k in range(16): rdA(vK+4*k, vS+4, k)
    A("L_Wpoll:")
    A(f"s_and_b32 s{sT0}, s{sWAVE}, 1\ns_lshl_b32 s{sT0}, s{sT0}, 5\ns_lshr_b32 s{sT1}, s{sIDX}, 3\ns_lshl_b32 s{sT1}, s{sT1}, 2\ns_add_u32 s{sT0}, s{sT0}, s{sT1}\ns_lshr_b32 s{sT1}, s{sWAVE}, 1\ns_add_u32 s{sT0}, s{sT0}, s{sT1}\ns_lshl_b32 s{sT0}, s{sT0}, 12")
    A(f"v_and_b32 v1, 31, {v(vLane)}\nv_lshl_add_u32 {v(t+20)}, v1, 4, s{sT0}\nv_and_b32 v1, 3, {v(vLane)}\nv_lshl_add_u32 {v(t+21)}, v1, 10, s{sT0}")
    l = spin_begin()
    A(f"global_load_dwordx2 {vr(t+16,2)}, {v(t+21)}, {sp(sWS)} offset:512 sc1")
    for s in range(4): A(f"global_load_dwordx4 {vr(t+4*s,4)}, {v(t+20)}, {sp(sWS)} offset:{1024*s} sc1")
    A("s_waitcnt vmcnt(0)")
    check_sent(range(t, t+18), t+18)
    spin_end(l, 6)
    stamp(10)
    A(f"v_max_f32_dpp {v(t+18)}, {v(t+16)}, {v(t+16)} quad_perm:[1,0,3,2] {DPPALL}")
    A(f"v_max_f32_dpp {v(t+18)}, {v(t+18)}, {v(t+18)} quad_perm:[2,3,0,1] {DPPALL}")
    A(f"v_sub_f32 {v(t+16)}, {v(t+16)}, {v(t+18)}\nv_exp_f32 {v(t+16)}, {v(t+16)}\nv_mul_f32 {v(t+17)}, {v(t+17)}, {v(t+16)}")
    A(f"v_add_f32_dpp {v(t+17)}, {v(t+17)}, {v(t+17)} quad_perm:[1,0,3,2] {DPPALL}")
    A(f"v_add_f32_dpp {v(t+17)}, {v(t+17)}, {v(t+17)} quad_perm:[2,3,0,1] {DPPALL}")
    A(f"v_rcp_f32 {v(t+17)}, {v(t+17)}\nv_mul_f32 {v(t+16)}, {v(t+16)}, {v(t+17)}")
    for r in range(4): A(f"v_mul_f32_dpp {v(t+24+r)}, {v(t+16)}, {v(t+r)} quad_perm:[0,0,0,0] {DPPALL}")
    for s in range(1, 4):
        for r in range(4): A(f"v_fmac_f32_dpp {v(t+24+r)}, {v(t+16)}, {v(t+4*s+r)} quad_perm:[{s},{s},{s},{s}] {DPPALL}")
    A(f"v_cvt_pk_bf16_f32 {v(t+24)}, {v(t+24)}, {v(t+25)}\nv_cvt_pk_bf16_f32 {v(t+25)}, {v(t+26)}, {v(t+27)}")
    A(f"s_and_b32 s{sT0}, s{sWAVE}, 1\ns_mul_i32 s{sT0}, s{sT0}, {ACT_B}\ns_lshr_b32 s{sT1}, s{sWAVE}, 1\ns_lshl_b32 s{sT1}, s{sT1}, 8\ns_add_u32 s{sT0}, s{sT0}, s{sT1}")
    A(f"v_and_b32 v1, 31, {v(vLane)}\nv_lshl_add_u32 v1, v1, 3, s{sT0}\nds_write_b64 v1, {vr(t+24,2)} offset:{L_ACT}")
    A("s_waitcnt lgkmcnt(0)\ns_barrier")
    A(f"s_cmp_ge_u32 s{sWAVE}, 4\ns_cbranch_scc1 L_fin")
    out_off(t, 2048, 4)
    A(f"s_lshr_b32 s{sT0}, s{sIDX}, 3\ns_lshl_b32 s{sT0}, s{sT0}, 12\ns_and_b32 s{sT1}, s{sIDX}, 7\ns_lshl_b32 s{sT1}, s{sT1}, 8\ns_add_u32 s{sT0}, s{sT0}, s{sT1}\ns_add_u32 s{sT0}, s{sT0}, {WS_ATT}\nv_add_u32 {v(t)}, s{sT0}, {v(t)}")
    gemv_pre(vS, vS+5, vK, vV)
    sanitize(range(vS, vS+4))
    exec_j2()
    A(f"global_store_dwordx4 {v(t)}, {vr(vS,4)}, {sp(sWS)} sc1")
    exec_all()
    stamp(11)
    A("s_branch L_fin")

    A("L_M1:")
    A(f"v_lshrrev_b32 v1, 4, {v(vLane)}\nv_bfe_u32 v2, {v(vLane)}, 2, 2\nv_lshl_add_u32 v3, v1, 3, v2\nv_lshlrev_b32 v3, 10, v3")
    A(f"v_and_b32 v1, 1, v1\nv_lshl_add_u32 v1, v1, 2, v2\ns_lshl_b32 s{sT0}, s{sWAVE}, 2\nv_xor_b32 v1, s{sT0}, v1")
    A(f"v_and_b32 v2, 3, {v(vLane)}\nv_lshl_add_u32 v3, v2, 3, v3\nv_add_u32 v3, {L_DOWN}, v3")
    for tt in range(4):
        A(f"v_xor_b32 v2, {tt}, v1\nv_lshl_add_u32 v2, v2, 5, v3")
        A(f"ds_read_b64_tr_b16 {vr(vQB+4*tt,2)}, v2\nds_read_b64_tr_b16 {vr(vQB+4*tt+2,2)}, v2 offset:4096")
    A(f"s_cmp_ge_u32 s{sWAVE}, 4\ns_cbranch_scc1 L_Mbar1")
    gemv_addr(vS+4, vS+5, rowb=64)
    for k in range(16): rdA(vK+4*k, vS+4, k, rowb=64)
    A(f"s_cmp_ge_u32 s{sWAVE}, 2\ns_cbranch_scc1 L_Mbar1")
    XP = vT; GA = vT+4; SB = vT+8; CB = vT+12; GB = vT+16
    A(f"s_lshl_b32 s{sT0}, s{sWAVE}, 10\nv_lshl_add_u32 v1, {v(vLane)}, 3, s{sT0}")
    A(f"global_load_dwordx2 {vr(XP,2)}, v1, {sp(sX)}\nglobal_load_dwordx2 {vr(XP+2,2)}, v1, {sp(sX)} offset:512")
    A(f"s_mul_i32 s{sT0}, s{sWAVE}, 6144\ns_add_u32 s{sT0}, s{sT0}, {WS_MOD+2048}\nv_lshl_add_u32 v3, {v(vLane)}, 3, s{sT0}")
    A(f"s_bfe_u32 s{sT0}, s{sIDX}, 0x10004\ns_mul_i32 s{sT0}, s{sT0}, 6144\ns_and_b32 s{sT1}, s{sIDX}, 15\ns_lshl_b32 s{sT1}, s{sT1}, 6\ns_add_u32 s{sT0}, s{sT0}, s{sT1}\ns_add_u32 s{sT0}, s{sT0}, {WS_MOD+5120}")
    A(f"v_and_b32 v2, 7, {v(vLane)}\nv_lshl_add_u32 {v(vT+18)}, v2, 3, s{sT0}")
    l = spin_begin()
    for i, r in enumerate((GA, SB, CB)):
        A(f"global_load_dwordx2 {vr(r,2)}, v3, {sp(sWS)} offset:{1024*i} sc1\nglobal_load_dwordx2 {vr(r+2,2)}, v3, {sp(sWS)} offset:{1024*i+512} sc1")
    A(f"global_load_dwordx2 {vr(GB,2)}, {v(vT+18)}, {sp(sWS)} sc1\ns_waitcnt vmcnt(0)")
    check_sent(range(GA, GA+14), vT+19)
    spin_end(l, 7)
    X8 = vT+20; G8 = vT+28
    for i in range(4): unpack(XP+i, X8+2*i, X8+2*i+1)
    for i in range(4): unpack(GA+i, G8+2*i, G8+2*i+1)
    A(f"s_lshl_b32 s{sT0}, s{sWAVE}, 11\ns_add_u32 s{sT0}, s{sT0}, {WS_ATT}\nv_lshl_add_u32 v3, {v(vLane)}, 4, s{sT0}")
    for kg in range(1, 8): A(f"v_add_u32 {v(vBt+kg)}, {4096*kg}, v3")
    A(f"v_mov_b32 {v(vBt)}, v3")
    l = spin_begin()
    for kg in range(8):
        A(f"global_load_dwordx4 {vr(vV+8*kg,4)}, {v(vBt+kg)}, {sp(sWS)} sc1\nglobal_load_dwordx4 {vr(vV+8*kg+4,4)}, {v(vBt+kg)}, {sp(sWS)} offset:1024 sc1")
    A("s_waitcnt vmcnt(0)")
    check_sent(range(vV, vV+64), vT+19)
    spin_end(l, 8)
    stamp(10)
    for step in (32, 16, 8):
        for i in range(0, step, 2): A(f"v_pk_add_f32 {vr(vV+i,2)}, {vr(vV+i,2)}, {vr(vV+step+i,2)}")
    round_pairs(range(vV, vV+8), vT+36)
    for i in range(8): A(f"v_mul_f32 {v(G8+i)}, {v(G8+i)}, {v(vV+i)}")
    round_pairs(range(G8, G8+8), vT+36)
    for i in range(8): A(f"v_add_f32 {v(X8+i)}, {v(X8+i)}, {v(G8+i)}")
    for i in range(4): A(f"v_cvt_pk_bf16_f32 {v(XP+i)}, {v(X8+2*i)}, {v(X8+2*i+1)}")
    for i in range(4): unpack(XP+i, X8+2*i, X8+2*i+1)
    A(f"s_lshl_b32 s{sT0}, s{sWAVE}, 10\nv_lshl_add_u32 v1, {v(vLane)}, 3, s{sT0}")
    A(f"ds_write_b64 v1, {vr(XP,2)} offset:{L_X2}\nds_write_b64 v1, {vr(XP+2,2)} offset:{L_X2+512}")
    layernorm8(X8, G8, vT+36)
    modulate(G8, CB, SB, vT+40, XP)
    A(f"s_mul_i32 s{sT0}, s{sWAVE}, {ACT_B}\nv_lshl_add_u32 v1, {v(vLane)}, 3, s{sT0}")
    A(f"ds_write_b64 v1, {vr(XP,2)} offset:{L_ACT}\nds_write_b64 v1, {vr(XP+2,2)} offset:{L_ACT+512}")
    A("L_Mbar1:")
    A("s_waitcnt lgkmcnt(0)\ns_barrier")
    A(f"s_cmp_ge_u32 s{sWAVE}, 4\ns_cbranch_scc1 L_Mbar2")
    A(f"v_and_b32 v1, 1, {v(vLane)}\nv_lshlrev_b32 v1, 6, v1\nv_lshrrev_b32 v2, 4, {v(vLane)}\nv_lshl_add_u32 v1, v2, 3, v1")
    A(f"s_lshr_b32 s{sT0}, s{sWAVE}, 1\ns_lshl_b32 s{sT0}, s{sT0}, 7\ns_and_b32 s{sT1}, s{sWAVE}, 1\ns_lshl_b32 s{sT1}, s{sT1}, 5\ns_add_u32 s{sT0}, s{sT0}, s{sT1}\nv_add_u32 {v(vS+6)}, s{sT0}, v1")
    gemv_pre(vS, vS+5, vK, vV)
    A(f"v_cvt_pk_bf16_f32 {v(vS+8)}, {v(vS)}, {v(vS+1)}\nv_cvt_pk_bf16_f32 {v(vS+9)}, {v(vS+2)}, {v(vS+3)}")
    exec_j2()
    A(f"ds_write_b64 {v(vS+6)}, {vr(vS+8,2)} offset:{L_GU}")
    exec_all()
    A("L_Mbar2:")
    A(f"v_and_b32 v1, 1, {v(vLane)}\nv_lshlrev_b32 v1, 6, v1\nv_lshrrev_b32 v2, 4, {v(vLane)}\nv_lshl_add_u32 v1, v2, 4, v1")
    A("s_waitcnt lgkmcnt(0)\ns_barrier")
    g = vT+20
    A(f"ds_read_b128 {vr(g,4)}, v1 offset:{L_GU}\nds_read_b128 {vr(g+4,4)}, v1 offset:{L_GU+128}")
    A(f"v_and_b32 v1, 1, {v(vLane)}\nv_lshlrev_b32 v1, 11, v1\nv_lshrrev_b32 v2, 4, {v(vLane)}\nv_lshl_add_u32 v1, v2, 4, v1")
    A(f"s_lshl_b32 s{sT0}, s{sIDX}, 12\ns_lshl_b32 s{sT1}, s{sWAVE}, 8\ns_add_u32 s{sT0}, s{sT0}, s{sT1}\ns_add_u32 s{sT0}, s{sT0}, {WS_YP}\nv_add_u32 v3, s{sT0}, v1")
    A("s_waitcnt lgkmcnt(0)")
    for i in range(4): unpack(g+i, g+8+2*i, g+9+2*i)
    for i in range(4): unpack(g+4+i, g+16+2*i, g+17+2*i)
    for i in range(8): A(f"v_mul_f32 {v(g+8+i)}, {v(g+8+i)}, {v(g+16+i)}")
    for i in range(4): A(f"v_cvt_pk_bf16_f32 {v(g+i)}, {v(g+8+2*i)}, {v(g+9+2*i)}")
    for tt in range(4):
        A(f"v_mfma_f32_16x16x32_bf16 {vr(vS+4*tt,4)}, {vr(vQB+4*tt,4)}, {vr(g,4)}, 0")
    sanitize(range(vS, vS+16))
    exec_j2()
    for tt in range(4): A(f"global_store_dwordx4 v3, {vr(vS+4*tt,4)}, {sp(sWS)} offset:{64*tt} sc1")
    exec_all()
    stamp(11)
    A(f"s_cmp_lg_u32 s{sWAVE}, 0\ns_cbranch_scc1 L_fin\ns_cmp_ge_u32 s{sIDX}, 32\ns_cbranch_scc1 L_fin")
    A(f"s_lshr_b32 s{sT0}, s{sIDX}, 4\ns_and_b32 s{sT1}, s{sIDX}, 15")
    A(f"s_lshl_b32 s{sT2}, s{sT0}, 11\ns_lshl_b32 s{sT3}, s{sT1}, 7\ns_add_u32 s{sT2}, s{sT2}, s{sT3}\ns_add_u32 s{sT2}, s{sT2}, {WS_YP}")
    A(f"v_lshrrev_b32 v1, 3, {v(vLane)}\nv_lshlrev_b32 v1, 12, v1\nv_and_b32 v2, 7, {v(vLane)}\nv_lshl_add_u32 v1, v2, 4, v1\nv_add_u32 {v(vBt)}, s{sT2}, v1")
    for i in range(1, 7): A(f"v_add_u32 {v(vBt+i)}, {32768*i}, {v(vBt)}")
    A(f"s_lshl_b32 s{sT2}, s{sT0}, 10\ns_lshl_b32 s{sT3}, s{sT1}, 6\ns_add_u32 s{sT2}, s{sT2}, s{sT3}\nv_lshl_add_u32 v3, v2, 3, s{sT2}")
    A(f"ds_read_b64 {vr(g,2)}, v3 offset:{L_X2}")
    l = spin_begin()
    for i in range(7): A(f"global_load_dwordx4 {vr(vV+4*i,4)}, {v(vBt+i)}, {sp(sWS)} sc1")
    A("s_waitcnt vmcnt(0)")
    check_sent(range(vV, vV+28), vT+19)
    spin_end(l, 9)
    stamp(12)
    y = vV
    for (a, b) in ((0, 4), (8, 12), (16, 20), (0, 8), (16, 24), (0, 16)):
        A(f"v_pk_add_f32 {vr(y+a,2)}, {vr(y+a,2)}, {vr(y+b,2)}\nv_pk_add_f32 {vr(y+a+2,2)}, {vr(y+a+2,2)}, {vr(y+b+2,2)}")
    for r in range(4): A(f"v_add_f32_dpp {v(y+r)}, {v(y+r)}, {v(y+r)} row_ror:8 {DPPALL}")
    for op in ("v_permlane16_swap_b32", "v_permlane32_swap_b32"):
        for r in range(4): A(f"v_mov_b32 {v(y+4+r)}, {v(y+r)}")
        for r in range(4): A(f"{op} {v(y+r)}, {v(y+4+r)}")
        for r in range(4): A(f"v_add_f32 {v(y+r)}, {v(y+r)}, {v(y+4+r)}")
    round_pairs(range(y, y+4), y+4)
    A("s_waitcnt lgkmcnt(0)")
    unpack(GB, y+8, y+9); unpack(GB+1, y+10, y+11); unpack(g, y+12, y+13); unpack(g+1, y+14, y+15)
    for r in range(4): A(f"v_mul_f32 {v(y+r)}, {v(y+r)}, {v(y+8+r)}")
    round_pairs(range(y, y+4), y+4)
    for r in range(4): A(f"v_add_f32 {v(y+r)}, {v(y+r)}, {v(y+12+r)}")
    A(f"v_cvt_pk_bf16_f32 {v(y)}, {v(y)}, {v(y+1)}\nv_cvt_pk_bf16_f32 {v(y+1)}, {v(y+2)}, {v(y+3)}")
    A(f"s_mov_b64 exec, 0xff\nglobal_store_dwordx2 v3, {vr(y,2)}, {sp(sOUT)}")
    exec_all()
    A("L_fin:")
    if stamps:
        stamp(13)
        A(f"s_lshl_b32 s{sT0}, s2, 3\ns_add_u32 s{sT0}, s{sT0}, s{sWAVE}\ns_lshl_b32 s{sT0}, s{sT0}, 6\ns_add_u32 s{sT0}, s{sT0}, {WS_STAMP}\nv_mov_b32 v1, s{sT0}")
        for i in range(16): A(f"v_mov_b32 {v(vT+i)}, s{sSTAMP+i}")
        for i in range(4): A(f"global_store_dwordx4 v1, {vr(vT+4*i,4)}, {sp(sWS)} offset:{16*i}")
    A("L_end:\ns_endpgm")
    body = A.finalize()
    if stamps:
        init = "".join(f"    s_mov_b32 s{sSTAMP+i}, 0\n" for i in range(16))
        body = init + body
    tail = f""".section .rodata,"a"
.p2align 6
.amdhsa_kernel {KNAME}
  .amdhsa_next_free_vgpr 256
  .amdhsa_next_free_sgpr 96
  .amdhsa_accum_offset 256
  .amdhsa_group_segment_fixed_size 0
  .amdhsa_kernarg_size 112
  .amdhsa_user_sgpr_count 2
  .amdhsa_user_sgpr_kernarg_segment_ptr 1
  .amdhsa_system_sgpr_workgroup_id_x 1
  .amdhsa_float_denorm_mode_32 3
.end_amdhsa_kernel
"""
    return hdr + body + tail

if __name__ == '__main__':
    from asmlib import build
    build(gen(stamps=False, dbgmode=True), "main", KNAME)
    build(gen(stamps=True, dbgmode=True), "main_st", KNAME)
    print("ok")
```
